```python
import torch

def _softmax(x, axis=-1):
    return torch.softmax(x, dim=axis)
def _gelu(x):
    return torch.nn.functional.gelu(x, approximate="tanh")
def _silu(x):
    return torch.nn.functional.silu(x)
def _sigmoid(x):
    return torch.sigmoid(x)
def _layernorm(x, axis=-1, eps=1e-5):
    m = x.mean(dim=axis, keepdim=True)
    v = x.var(dim=axis, keepdim=True, unbiased=False)
    return (x - m) / torch.sqrt(v + eps)
def _scatter_add(tgt, idx, src, axis=0):
    return tgt.clone().index_add_(axis, idx, src)
def _segment_sum(src, seg, n):
    out = torch.zeros((n,) + src.shape[1:], dtype=src.dtype)
    return out.index_add_(0, seg, src)
def _pad(x, pw):
    flat = tuple(v for pair in reversed(pw) for v in pair)
    return torch.nn.functional.pad(x, flat)

kernel_name = 'interleave_layers__grouped_kv_mqa__sliding_block__prompt'

def setup_inputs():

    _w = (lambda a: (lambda t: t.to(torch.bfloat16) if t.is_floating_point() else t)(torch.as_tensor(a)))
    def _A_setup():
        B, S, D, H = 1, 2048, 512, 32
        Dh = D // H
        return {
            "x": _w((lambda *s: torch.randn(*s, dtype=torch.bfloat16) * 0.05)(B, S, D)),
            "wq": _w((lambda *s: torch.randn(*s, dtype=torch.bfloat16) * 0.05)(D, H * Dh)),
            "wk": _w((lambda *s: torch.randn(*s, dtype=torch.bfloat16) * 0.05)(D, Dh)),
            "wv": _w((lambda *s: torch.randn(*s, dtype=torch.bfloat16) * 0.05)(D, Dh)),
            "wo": _w((lambda *s: torch.randn(*s, dtype=torch.bfloat16) * 0.05)(H * Dh, D)),
        }
    _A_in = _A_setup()

    def _B_setup():
        B, S, D = 1, 2048, 512
        return {
            "x": _w((lambda *s: torch.randn(*s, dtype=torch.bfloat16) * 0.05)(B, S, D)),
            "wqkv": _w((lambda *s: torch.randn(*s, dtype=torch.bfloat16) * 0.05)(D, 3 * D)),
            "wo": _w((lambda *s: torch.randn(*s, dtype=torch.bfloat16) * 0.05)(D, D)),
        }
    _B_in = _B_setup()

    return {
        "A_x": _A_in["x"],
        "A_wq": _A_in["wq"],
        "A_wk": _A_in["wk"],
        "A_wv": _A_in["wv"],
        "A_wo": _A_in["wo"],
        "B_x": _B_in["x"],
        "B_wqkv": _B_in["wqkv"],
        "B_wo": _B_in["wo"],
    }

def reference(A_x, A_wq, A_wk, A_wv, A_wo, B_x, B_wqkv, B_wo):
    def _A_ref(x, wq, wk, wv, wo):
        B, S, D = x.shape
        H = 32
        Dh = D // H
        q = (lambda x, *d: x.permute(*d))((x @ wq).reshape(B, S, H, Dh), 0, 2, 1, 3)
        k = x @ wk
        v = x @ wv
        scores = torch.einsum("bhqd,bkd->bhqk", q, k) * (Dh ** -0.5)
        p = _softmax(scores, axis=-1)
        o = torch.einsum("bhqk,bkd->bhqd", p, v)
        return (lambda x, *d: x.permute(*d))(o, 0, 2, 1, 3).reshape(B, S, H * Dh) @ wo

    def _B_ref(x, wqkv, wo):
        B, S, D = x.shape
        H = 32; Dh = D // H; W = 256
        qkv = (lambda x, *d: x.permute(*d))((x @ wqkv).reshape(B, S, 3, H, Dh), 2, 0, 3, 1, 4)
        q, k, v = qkv[0], qkv[1], qkv[2]
        scores = torch.einsum("bhqd,bhkd->bhqk", q, k) * (Dh ** -0.5)
        idx = torch.arange(S)
        mask = (idx[:, None] - idx[None, :] >= 0) & (idx[:, None] - idx[None, :] < W)
        scores = torch.where(mask[None, None], scores, -1e9)
        p = _softmax(scores, axis=-1)
        o = torch.einsum("bhqk,bhkd->bhqd", p, v)
        return (lambda x, *d: x.permute(*d))(o, 0, 2, 1, 3).reshape(B, S, D) @ wo

    x = A_x
    x = x + _A_ref(_layernorm(x, axis=-1), A_wq, A_wk, A_wv, A_wo)
    x = x + _B_ref(_layernorm(x, axis=-1), B_wqkv, B_wo)
    x = x + _A_ref(_layernorm(x, axis=-1), A_wq, A_wk, A_wv, A_wo)
    x = x + _B_ref(_layernorm(x, axis=-1), B_wqkv, B_wo)
    return x
```

```python
import re

REG_RE = re.compile(r'^(-|neg\()?(abs\(|\|)?([vsa])(?:(\d+)|\[(\d+):(\d+)\])\)?\|?\)?$')


def v(i, n=1):
    return f"v{i}" if n == 1 else f"v[{i}:{i+n-1}]"


def s(i, n=1):
    return f"s{i}" if n == 1 else f"s[{i}:{i+n-1}]"


def a(i, n=1):
    return f"a{i}" if n == 1 else f"a[{i}:{i+n-1}]"


def regs_of(op):
    op = op.strip()
    if op in ('vcc',):
        return {('s', 106), ('s', 107)}
    if op == 'vcc_lo':
        return {('s', 106)}
    if op == 'vcc_hi':
        return {('s', 107)}
    if op == 'exec':
        return {('s', 126), ('s', 127)}
    if op == 'exec_lo':
        return {('s', 126)}
    if op == 'exec_hi':
        return {('s', 127)}
    if op == 'm0':
        return {('s', 124)}
    m = REG_RE.match(op)
    if not m:
        return set()
    f = m.group(3)
    if m.group(4) is not None:
        return {(f, int(m.group(4)))}
    return {(f, i) for i in range(int(m.group(5)), int(m.group(6)) + 1)}


TRANS = ('v_exp_f32', 'v_log_f32', 'v_rcp_f32', 'v_rsq_f32', 'v_sqrt_f32', 'v_sin_f32', 'v_cos_f32',
         'v_rcp_iflag_f32', 'v_exp_f16')
RMW = ('v_fmac_f32', 'v_dot2c_f32_bf16', 'v_pk_fmac_f16', 'v_mac_f32')


class Ins:
    def __init__(self, op, ops, mods, text=None):
        self.op = op
        self.ops = ops
        self.mods = mods
        self.text = text
        self.defs = set()
        self.uses = set()
        self.kind = 'other'
        self.passes = 0
        self.srcC = set()
        self.srcAB = set()
        self.states = 1
        self.wide_store = set()
        self.classify()

    def classify(self):
        op, ops = self.op, self.ops
        R = [regs_of(o) for o in ops]
        allr = set().union(*R) if R else set()
        if op == 'label' or op == 'raw':
            self.kind = op
            self.states = 0
            return
        if op == 's_nop':
            self.kind = 'nop'
            self.states = int(ops[0], 0) + 1
            return
        if op.startswith('v_mfma') or op.startswith('v_smfmac'):
            self.kind = 'mfma'
            self.defs = R[0]
            self.srcAB = R[1] | R[2]
            if op.startswith('v_smfmac'):
                self.srcC = R[0]
                self.srcAB |= R[3]
            else:
                self.srcC = R[3]
            self.uses = self.srcAB | self.srcC
            self.passes = 8 if '32x32' in op else 4
            return
        if op.startswith('v_'):
            self.kind = 'valu'
            if op.startswith('v_cmp'):
                self.defs = R[0]
                self.uses = set().union(*R[1:])
                if op.startswith('v_cmpx'):
                    self.defs |= regs_of('exec')
            elif op.startswith('v_permlane') and 'swap' in op:
                self.defs = R[0] | R[1]
                self.uses = R[0] | R[1]
            elif op in ('v_add_co_u32', 'v_sub_co_u32', 'v_addc_co_u32', 'v_subb_co_u32'):
                self.defs = R[0] | R[1]
                self.uses = set().union(*R[2:])
            else:
                self.defs = R[0]
                self.uses = set().union(*R[1:]) if len(R) > 1 else set()
                if op in RMW or 'UNUSED_PRESERVE' in self.mods or op.startswith('v_writelane'):
                    self.uses |= R[0]
                if op.startswith('v_cndmask') and len(ops) == 3:
                    self.uses |= regs_of('vcc')
            return
        if op.startswith('buffer_') or op.startswith('global_'):
            self.kind = 'vmem'
            if 'store' in op or 'atomic' in op:
                self.uses = allr
                if 'x4' in op or 'x3' in op:
                    self.wide_store = R[0] if op.startswith('buffer_') else R[1]
                if 'atomic' in op and 'sc0' in self.mods:
                    self.defs = R[0]
            elif ' lds' in (' ' + self.mods) or '_lds_' in op:
                self.uses = allr | regs_of('m0')
                self.kind = 'vmem_lds'
            elif op in ('buffer_wbl2', 'buffer_inv'):
                pass
            else:
                self.defs = R[0]
                self.uses = set().union(*R[1:])
                if 'd16' in op:
                    self.uses |= R[0]
            return
        if op.startswith('ds_'):
            self.kind = 'ds'
            if 'write' in op or op.startswith('ds_add') or op.startswith('ds_or'):
                self.uses = allr
            else:
                self.defs = R[0]
                self.uses = set().union(*R[1:])
            return
        if op.startswith('s_'):
            self.kind = 'salu'
            if op.startswith('s_cmp') or op.startswith('s_cbranch') or op in (
                    's_branch', 's_waitcnt', 's_barrier', 's_endpgm', 's_setprio', 's_sleep', 's_bitcmp1_b32',
                    's_bitcmp0_b32', 's_setpc_b64'):
                self.uses = allr
            else:
                self.defs = R[0] if R else set()
                self.uses = set().union(*R[1:]) if len(R) > 1 else set()
                if 'saveexec' in op:
                    self.defs |= regs_of('exec')
            if op.startswith('s_load') or op.startswith('s_memtime') or op.startswith('s_memrealtime'):
                self.kind = 'smem'
            return
        raise ValueError("unknown op " + op)

    def render(self):
        if self.kind == 'label':
            return self.text + ':'
        if self.kind == 'raw':
            return self.text
        t = '    ' + self.op
        if self.ops:
            t += ' ' + ', '.join(self.ops)
        if self.mods:
            t += ' ' + self.mods
        return t


def is_v(r):
    return r[0] in ('v', 'a')


def need_states(p, c):
    n = 0
    pv = {r for r in p.defs if is_v(r)}
    ps = {r for r in p.defs if r[0] == 's'}
    if p.kind == 'valu':
        if c.kind == 'mfma' and (pv & c.uses):
            n = max(n, 2)
        if c.kind == 'mfma' and (ps & regs_of('exec')):
            n = max(n, 4)
        if c.kind == 'valu':
            if p.op in TRANS and (pv & c.uses) :
                n = max(n, 1)
            if c.op.startswith('v_permlane') and (pv & c.uses):
                n = max(n, 2)
            if (c.op.startswith('v_readlane') or c.op.startswith('v_readfirstlane')) and (pv & c.uses):
                n = max(n, 1)
            if 'dpp' in c.op or 'row_' in c.mods or 'quad_perm' in c.mods:
                if pv & c.uses:
                    n = max(n, 2)
                if ps & regs_of('exec'):
                    n = max(n, 5)
            if ps & c.uses:
                n = max(n, 4 if (c.op.startswith('v_readlane') or c.op.startswith('v_writelane')) else 2)
            if ('sdwa' in p.op or 'op_sel' in p.mods) and (pv & (c.uses | c.defs)):
                n = max(n, 1)
            if p.op.startswith('v_dot') and (pv & (c.uses | c.defs)):
                if not (c.op == p.op and not (pv & (regs_of(c.ops[1]) | regs_of(c.ops[2])))):
                    n = max(n, 3)
            if p.op.startswith('v_cmpx') and (c.op.startswith('v_readlane') or c.op.startswith('v_readfirstlane') or c.op.startswith('v_permlane')):
                n = max(n, 4)
        if c.kind in ('vmem', 'vmem_lds', 'ds'):
            if ps & c.uses:
                n = max(n, 5)
            if p.op in TRANS and (pv & c.uses):
                n = max(n, 1)
            if p.op.startswith('v_dot') and (pv & c.uses):
                n = max(n, 3)
        if c.kind in ('salu',) and (ps & (c.uses | (regs_of('vcc') if 'vcc' in c.op else set()))):
            n = max(n, 1)
    if p.kind == 'mfma':
        P = p.passes
        if c.kind == 'mfma':
            if pv & c.srcAB:
                n = max(n, {4: 8, 8: 12}[P])
            if pv & c.srcC:
                if pv == c.srcC and c.passes == P:
                    pass
                else:
                    n = max(n, {4: 6, 8: 10}[P])
            elif pv & c.defs:
                n = max(n, {4: 6, 8: 10}[P])
        elif c.kind in ('valu', 'vmem', 'vmem_lds', 'ds'):
            if pv & (c.uses | c.defs):
                n = max(n, {4: 8, 8: 12}[P])
        if c.kind == 'valu' and (p.srcC & c.defs):
            n = max(n, {4: 3, 8: 7}[P])
    if p.kind == 'salu':
        if (p.defs & regs_of('m0')) and c.kind == 'vmem_lds':
            n = max(n, 1)
    if p.wide_store:
        if p.wide_store & c.defs:
            n = max(n, 2 if c.kind in ('valu', 'mfma') else 1)
    return n


class Asm:
    def __init__(self):
        self.ins = []
        self.nlabel = 0

    def I(self, op, *ops, mods=''):
        ops = [str(o) if not isinstance(o, str) else o for o in ops]
        self.ins.append(Ins(op, ops, mods))

    def __getattr__(self, name):
        if name.startswith(('v_', 's_', 'ds_', 'buffer_', 'global_')):
            def f(*ops, mods=''):
                self.I(name, *ops, mods=mods)
            return f
        raise AttributeError(name)

    def label(self, name):
        self.ins.append(Ins('label', [], '', text=name))

    def raw(self, text):
        self.ins.append(Ins('raw', [], '', text=text))

    def comment(self, text):
        self.raw('    ; ' + text)

    def newlabel(self, pfx='L'):
        self.nlabel += 1
        return f"{pfx}_{self.nlabel}"

    def wait(self, vm=None, lgkm=None):
        t = []
        if vm is not None:
            assert 0 <= vm <= 63
            t.append(f"vmcnt({vm})")
        if lgkm is not None:
            assert 0 <= lgkm <= 15
            t.append(f"lgkmcnt({lgkm})")
        self.I('s_waitcnt', ' '.join(t))

    def finish(self):
        out = []
        npad = 0
        for c in self.ins:
            if c.kind in ('label', 'raw'):
                out.append(c)
                continue
            dist = 0
            need = 0
            for p in reversed(out):
                if p.kind in ('label', 'raw'):
                    continue
                if p.op in ('s_endpgm', 's_branch'):
                    break
                n = need_states(p, c)
                if n > dist:
                    need = max(need, n - dist)
                dist += p.states
                if dist >= 20:
                    break
            while need > 0:
                k = min(need, 16)
                out.append(Ins('s_nop', [str(k - 1)], ''))
                npad += 1
                need -= k
            out.append(c)
        self.npad = npad
        return '\n'.join(i.render() for i in out) + '\n'

    def fence(self, n=12):
        while n > 0:
            k = min(n, 16)
            self.I('s_nop', str(k - 1))
            n -= k
```

```python
import sys, struct
from asmlib import *

NAME = "interleave_layers__grouped_kv_mqa__sliding_block__prompt"
KB = 1024
WF_OA, WF_OB, WF_QA, WF_B, WF_KVA = 0x000000, 0x080000, 0x100000, 0x180000, 0x300000
KVA = [0x310000, 0x330000]
QA = 0x400000
OB = [0x600000 + i * 0x200000 for i in range(4)]
XB = [0xE00000 + i * 0x200000 for i in range(3)]
KVB = [0x1400000, 0x1800000]
WS_SIZE = 0x10000000

QSCALE = 0.25 * 1.4426950408889634


def f2u(f):
    return struct.unpack('<I', struct.pack('<f', f))[0]


S_WS = 8
S_X = 12
S_OUT = 16
S_C, S_J, S_W, S_RQ, S_KH = 20, 21, 22, 23, 24
S_T = 26

V_L16 = 1
V_LANE = 2
V_ACT, V_W, V_ACC = 32, 64, 192


def srd(A, d, plo, phi, size):
    A.s_mov_b32(s(d), s(plo))
    A.s_and_b32(s(d + 1), s(phi), '0xffff')
    A.s_mov_b32(s(d + 2), hex(size))
    A.s_mov_b32(s(d + 3), '0x00020000')


def prologue(A, name, nwg=256):
    A.raw('.p2align 8')
    A.raw(f'.globl {name}')
    A.raw(f'.type {name},@function')
    A.label(name)
    A.s_cmp_ge_u32(s(2), nwg if nwg <= 64 else hex(nwg))
    A.s_cbranch_scc0(name + '_go')
    A.s_endpgm()
    A.label(name + '_go')
    A.s_load_dwordx2(s(4, 2), s(0, 2), '0x50')
    A.s_load_dwordx2(s(6, 2), s(0, 2), '0x0')
    A.s_load_dwordx2(s(40, 2), s(0, 2), '0x40')
    A.v_lshrrev_b32(v(3), 6, v(0))
    A.v_and_b32(v(V_LANE), 63, v(0))
    A.v_readfirstlane_b32(s(S_W), v(3))
    A.v_lshlrev_b32(v(V_L16), 4, v(V_LANE))
    A.s_and_b32(s(S_C), s(2), 7)
    A.s_lshl_b32(s(S_C), s(S_C), 2)
    A.s_lshr_b32(s(S_T), s(2), 6)
    A.s_add_u32(s(S_C), s(S_C), s(S_T))
    A.s_lshr_b32(s(S_J), s(2), 3)
    A.s_and_b32(s(S_J), s(S_J), 7)
    A.s_lshr_b32(s(S_RQ), s(S_W), 1)
    A.s_and_b32(s(S_KH), s(S_W), 1)
    A.wait(lgkm=0)
    srd(A, S_WS, 4, 5, WS_SIZE)
    srd(A, S_X, 6, 7, 2048 * 1024)
    srd(A, S_OUT, 40, 41, 2048 * 1024)


def k0(A):
    name = 'k0_kernel'
    A.raw('.p2align 8')
    A.raw(f'.globl {name}')
    A.raw(f'.type {name},@function')
    A.label(name)
    A.s_cmp_ge_u32(s(2), hex(194))
    A.s_cbranch_scc0(name + '_go')
    A.s_endpgm()
    A.label(name + '_go')
    A.s_load_dwordx2(s(4, 2), s(0, 2), '0x50')
    A.s_load_dwordx16(s(44, 16), s(0, 2), '0x0')
    A.v_lshrrev_b32(v(3), 6, v(0))
    A.v_and_b32(v(2), 63, v(0))
    A.v_readfirstlane_b32(s(S_W), v(3))
    A.v_and_b32(v(4), 15, v(2))
    A.v_lshrrev_b32(v(5), 4, v(2))
    A.s_lshl_b32(s(20), s(2), 2)
    A.s_add_u32(s(20), s(20), s(S_W))
    A.s_lshr_b32(s(21), s(20), 7)
    A.s_lshr_b32(s(23), s(20), 4)
    A.s_and_b32(s(23), s(23), 7)
    A.s_and_b32(s(24), s(20), 15)
    A.wait(lgkm=0)
    srd(A, S_WS, 4, 5, WS_SIZE)
    def setm(pi, size, ld, colb, dst, jstr, nat):
        A.s_mov_b32(s(6), s(44 + 2 * pi))
        A.s_mov_b32(s(7), s(45 + 2 * pi))
        A.s_mov_b32(s(30), hex(size))
        A.s_mov_b32(s(31), hex(ld))
        A.s_mov_b32(s(32), hex(colb))
        A.s_mov_b32(s(33), hex(dst))
        A.s_mov_b32(s(34), hex(jstr))
        A.s_mov_b32(s(35), nat)
    tbl = [
        (4, 512 * KB, 1024, 0, WF_OA, 64 * KB, 0),
        (7, 512 * KB, 1024, 0, WF_OB, 64 * KB, 0),
        (1, 512 * KB, 1024, 0, WF_QA, 64 * KB, 0),
        (6, 1536 * KB, 3072, 1024, WF_B, 192 * KB, 0),
        (6, 1536 * KB, 3072, 2048, WF_B + 64 * KB, 192 * KB, 1),
        (6, 1536 * KB, 3072, 0, WF_B + 128 * KB, 192 * KB, 0),
    ]
    for i, t in enumerate(tbl):
        setm(*t)
        A.s_cmp_eq_u32(s(21), i)
        A.s_cbranch_scc1('k0_reg')
    A.s_bitcmp1_b32(s(20), 2)
    A.s_cselect_b32(s(6), s(44 + 6), s(44 + 4))
    A.s_cselect_b32(s(7), s(45 + 6), s(45 + 4))
    A.s_cselect_b32(s(33), hex(16 * KB), 0)
    A.s_add_u32(s(33), s(33), hex(WF_KVA))
    A.s_mov_b32(s(30), hex(16 * KB))
    A.s_mov_b32(s(31), 32)
    A.s_and_b32(s(24), s(20), 3)
    A.v_lshrrev_b32(v(6), 2, v(4))
    A.s_lshl_b32(s(25), s(24), 2)
    A.v_add_u32(v(6), s(25), v(6))
    A.v_lshlrev_b32(v(7), 10, v(6))
    A.v_lshlrev_b32(v(8), 8, v(5))
    A.v_add_u32(v(7), v(7), v(8))
    A.v_and_b32(v(9), 3, v(4))
    A.v_lshlrev_b32(v(10), 3, v(9))
    A.v_add_u32(v(10), v(7), v(10))
    A.v_lshlrev_b32(v(11), 6, v(9))
    A.v_add_u32(v(11), v(7), v(11))
    A.s_mov_b32(s(36), 0)
    A.s_branch('k0_body')
    A.label('k0_reg')
    A.s_mul_i32(s(36), s(24), s(31))
    A.s_lshl_b32(s(36), s(36), 5)
    A.s_add_u32(s(36), s(36), s(32))
    A.s_lshl_b32(s(25), s(23), 7)
    A.s_add_u32(s(36), s(36), s(25))
    A.s_lshl_b32(s(25), s(31), 3)
    A.v_mul_lo_u32(v(10), v(5), s(25))
    A.v_lshlrev_b32(v(6), 3, v(4))
    A.v_add_u32(v(10), v(10), v(6))
    A.s_mul_i32(s(25), s(23), s(34))
    A.s_add_u32(s(33), s(33), s(25))
    A.s_lshl_b32(s(25), s(24), 12)
    A.s_add_u32(s(33), s(33), s(25))
    A.v_lshrrev_b32(v(6), 3, v(4))
    A.v_lshlrev_b32(v(6), 1, v(6))
    A.v_and_b32(v(7), 1, v(4))
    A.v_or_b32(v(6), v(6), v(7))
    A.v_bfe_u32(v(7), v(4), 1, 2)
    A.v_lshrrev_b32(v(8), 2, v(4))
    A.v_and_b32(v(9), 3, v(4))
    A.s_cmp_eq_u32(s(35), 1)
    A.s_cselect_b64('vcc', -1, 0)
    A.v_cndmask_b32(v(6), v(6), v(8), 'vcc')
    A.v_cndmask_b32(v(7), v(7), v(9), 'vcc')
    A.s_lshr_b32(s(25), s(24), 3)
    A.s_lshl_b32(s(25), s(25), 1)
    A.v_xor_b32(v(6), s(25), v(6))
    A.v_lshlrev_b32(v(6), 10, v(6))
    A.v_lshlrev_b32(v(7), 6, v(7))
    A.v_lshlrev_b32(v(8), 8, v(5))
    A.v_add3_u32(v(11), v(6), v(7), v(8))
    A.label('k0_body')
    A.s_mov_b32(s(S_X), s(6))
    A.s_and_b32(s(S_X + 1), s(7), '0xffff')
    A.s_mov_b32(s(S_X + 2), s(30))
    A.s_mov_b32(s(S_X + 3), '0x00020000')
    for i in range(8):
        A.buffer_load_dwordx2(v(16 + 2 * i, 2), v(10), s(S_X, 4), s(36), mods='offen')
        if i < 7:
            A.s_add_u32(s(36), s(36), s(31))
    A.s_mov_b32(s(37), '0x05040100')
    A.s_mov_b32(s(38), '0x07060302')
    A.wait(vm=0)
    for e in range(4):
        for ip in range(4):
            lo = 16 + 2 * (2 * ip) + (e >> 1)
            hi = 16 + 2 * (2 * ip + 1) + (e >> 1)
            A.v_perm_b32(v(32 + 4 * e + ip), v(hi), v(lo), s(37 + (e & 1)))
    for e in range(4):
        A.buffer_store_dwordx4(v(32 + 4 * e, 4), v(11), s(S_WS, 4), s(33), mods=f'offen offset:{16*e}')
    A.s_endpgm()


def load_act(A, base, rowmajor):
    t = S_T
    if rowmajor:
        A.v_and_b32(v(4), 15, v(V_LANE))
        A.v_lshlrev_b32(v(4), 10, v(4))
        A.v_lshrrev_b32(v(5), 4, v(V_LANE))
        A.v_lshl_add_u32(v(4), v(5), 4, v(4))
        A.s_lshl_b32(s(t), s(S_C), 16)
        A.s_lshl_b32(s(t + 1), s(S_RQ), 14)
        A.s_add_u32(s(t), s(t), s(t + 1))
        A.s_lshl_b32(s(t + 1), s(S_KH), 9)
        A.s_add_u32(s(t), s(t), s(t + 1))
        for ks in range(8):
            A.buffer_load_dwordx4(v(V_ACT + 4 * ks, 4), v(4), s(S_X, 4), s(t), mods=f'offen offset:{ks*64}')
    else:
        A.s_lshl_b32(s(t), s(S_C), 16)
        A.s_lshl_b32(s(t + 1), s(S_W), 13)
        A.s_add_u32(s(t), s(t), s(t + 1))
        A.s_add_u32(s(t), s(t), hex(base))
        A.s_add_u32(s(t + 1), s(t), hex(4096))
        for ks in range(8):
            A.buffer_load_dwordx4(v(V_ACT + 4 * ks, 4), v(V_L16), s(S_WS, 4), s(t + (ks >> 2)),
                                  mods=f'offen offset:{(ks&3)*1024}')


def load_w(A, sbase):
    t = S_T + 2
    A.s_lshl_b32(s(t), s(S_KH), 15)
    A.s_add_u32(s(t), s(t), s(sbase))
    for ks in range(8):
        for lt in range(4):
            A.buffer_load_dwordx4(v(V_W + 16 * ks + 4 * lt, 4), v(V_L16), s(S_WS, 4), s(t), mods=f'offen offset:{lt*1024}')
        if ks < 7:
            A.s_add_u32(s(t), s(t), hex(4096))


def load_cs_frags(A, sbase, dst):
    t = S_T + 3
    A.s_lshl_b32(s(t), s(S_KH), 15)
    A.s_add_u32(s(t), s(t), s(sbase))
    A.s_lshl_b32(s(t + 1), s(S_RQ), 10)
    A.s_add_u32(s(t), s(t), s(t + 1))
    for ks in range(8):
        A.buffer_load_dwordx4(v(dst + 4 * ks, 4), v(V_L16), s(S_WS, 4), s(t), mods='offen')
        if ks < 7:
            A.s_add_u32(s(t), s(t), hex(4096))


def gemm4(A, acc, swap, zero_init=(True, True, True, True)):
    for ks in range(8):
        for lt in range(4):
            w = v(V_W + 16 * ks + 4 * lt, 4)
            x = v(V_ACT + 4 * ks, 4)
            c = '0' if (ks == 0 and zero_init[lt]) else v(acc + 4 * lt, 4)
            if swap:
                A.v_mfma_f32_16x16x32_bf16(v(acc + 4 * lt, 4), x, w, c)
            else:
                A.v_mfma_f32_16x16x32_bf16(v(acc + 4 * lt, 4), w, x, c)


L_XCH = 0
L_STAT = 64 * KB
L_CS = 65 * KB
L_XKV = 67 * KB
V_ONES = 240


def stats_partial(A):
    A.v_mov_b32(v(4), 0)
    A.v_mov_b32(v(5), 0)
    for i in range(32):
        A.v_dot2_f32_bf16(v(4), v(V_ACT + i), v(V_ONES), v(4))
        A.v_dot2_f32_bf16(v(5), v(V_ACT + i), v(V_ACT + i), v(5))
    A.v_permlane32_swap_b32(v(4), v(5))
    A.v_add_f32(v(4), v(4), v(5))
    A.v_mov_b32(v(5), v(4))
    A.v_permlane16_swap_b32(v(4), v(5))
    A.v_add_f32(v(4), v(4), v(5))
    A.v_and_b32(v(6), 15, v(V_LANE))
    A.v_lshlrev_b32(v(6), 4, v(6))
    A.v_lshrrev_b32(v(7), 5, v(V_LANE))
    A.v_lshl_add_u32(v(6), v(7), 2, v(6))
    A.s_lshl_b32(s(S_T), s(S_RQ), 8)
    A.s_lshl_b32(s(S_T + 1), s(S_KH), 3)
    A.s_add_u32(s(S_T), s(S_T), s(S_T + 1))
    A.s_add_u32(s(S_T), s(S_T), hex(L_STAT))
    A.v_add_u32(v(6), s(S_T), v(6))
    A.ds_write_b32(v(6), v(4))


def stats_final(A, src, d_negmean, d_rs, scale):
    A.v_add_f32(v(src), v(src), v(src + 2))
    A.v_add_f32(v(src + 1), v(src + 1), v(src + 3))
    A.v_mul_f32(v(d_negmean), hex(f2u(-1.0 / 512)), v(src))
    A.v_mul_f32(v(src + 1), hex(f2u(1.0 / 512)), v(src + 1))
    A.v_fma_f32(v(src + 1), '-' + v(d_negmean), v(d_negmean), v(src + 1))
    A.v_max_f32(v(src + 1), 0, v(src + 1))
    A.v_add_f32(v(src + 1), hex(f2u(1e-5)), v(src + 1))
    A.v_rsq_f32(v(d_rs), v(src + 1))
    if scale != 1.0:
        A.v_mul_f32(v(d_rs), hex(f2u(scale)), v(d_rs))


def cs_partial(A, frags, ty, tmp):
    for ks in range(8):
        A.v_mfma_f32_16x16x32_bf16(v(tmp, 4), v(frags + 4 * ks, 4), v(V_ONES, 4), '0' if ks == 0 else v(tmp, 4))
    A.s_lshl_b32(s(S_T), s(S_KH), 1)
    A.s_xor_b32(s(S_T), s(S_T), s(S_RQ))
    A.s_lshl_b32(s(S_T), s(S_T), 6)
    A.s_lshl_b32(s(S_T + 1), s(S_KH), 8)
    A.s_add_u32(s(S_T), s(S_T), s(S_T + 1))
    A.s_add_u32(s(S_T), s(S_T), hex(L_CS + ty * 512))
    A.v_and_b32(v(8), 48, v(V_LANE))
    A.v_add_u32(v(8), s(S_T), v(8))
    A.ds_write_b128(v(8), v(tmp, 4))


def xch_addr(A, vw, vr):
    A.s_lshl_b32(s(S_T), s(S_W), 13)
    A.v_add_u32(v(vw), s(S_T), v(V_L16))
    A.v_xor_b32(v(vr), hex(8192), v(vw))


def epi_qk(A, acc, part, ty, negmean, rs, out, tmp):
    A.s_lshl_b32(s(S_T), s(S_KH), 7)
    A.s_add_u32(s(S_T), s(S_T), hex(L_CS + ty * 512))
    A.v_and_b32(v(8), 48, v(V_LANE))
    A.v_add_u32(v(8), s(S_T), v(8))
    A.ds_read_b128(v(tmp, 4), v(8))
    A.ds_read_b128(v(tmp + 4, 4), v(8), mods='offset:64')
    A.ds_read_b128(v(tmp + 8, 4), v(8), mods='offset:256')
    A.ds_read_b128(v(tmp + 12, 4), v(8), mods='offset:320')
    A.wait(lgkm=0)
    for i in range(8):
        A.v_add_f32(v(tmp + i), v(tmp + i), v(tmp + 8 + i))
        A.v_add_f32(v(acc + i), v(acc + i), v(part + i))
        A.v_fma_f32(v(acc + i), v(negmean), v(tmp + i), v(acc + i))
        A.v_mul_f32(v(acc + i), v(rs), v(acc + i))
    for i in range(4):
        A.v_cvt_pk_bf16_f32(v(out + i), v(acc + 2 * i), v(acc + 2 * i + 1))


def set_ones(A):
    for i in range(4):
        A.v_mov_b32(v(V_ONES + i), '0x3f803f80')


def q_store(A, src):
    A.v_and_b32(v(8), 15, v(V_LANE))
    A.v_lshlrev_b32(v(8), 4, v(8))
    A.v_bfe_u32(v(9), v(V_LANE), 4, 1)
    A.v_lshl_add_u32(v(8), v(9), 9, v(8))
    A.v_lshrrev_b32(v(9), 5, v(V_LANE))
    A.v_lshl_add_u32(v(8), v(9), 11, v(8))
    t = S_T
    A.s_lshl_b32(s(t), s(S_C), 16)
    A.s_lshl_b32(s(t + 1), s(S_J), 13)
    A.s_add_u32(s(t), s(t), s(t + 1))
    A.s_lshl_b32(s(t + 1), s(S_KH), 12)
    A.s_add_u32(s(t), s(t), s(t + 1))
    A.s_lshr_b32(s(t + 1), s(S_RQ), 1)
    A.s_lshl_b32(s(t + 1), s(t + 1), 10)
    A.s_add_u32(s(t), s(t), s(t + 1))
    A.s_and_b32(s(t + 1), s(S_RQ), 1)
    A.s_lshl_b32(s(t + 1), s(t + 1), 8)
    A.s_add_u32(s(t), s(t), s(t + 1))
    A.s_add_u32(s(t), s(t), hex(QA))
    A.buffer_store_dwordx4(v(src, 4), v(8), s(S_WS, 4), s(t), mods='offen')


def read_stats_row(A, dst):
    A.v_and_b32(v(6), 15, v(V_LANE))
    A.v_lshlrev_b32(v(6), 4, v(6))
    A.s_lshl_b32(s(S_T), s(S_RQ), 8)
    A.s_add_u32(s(S_T), s(S_T), hex(L_STAT))
    A.v_add_u32(v(6), s(S_T), v(6))
    A.ds_read_b128(v(dst, 4), v(6))


def read_stats_4rows(A, dst):
    A.v_and_b32(v(6), 48, v(V_LANE))
    A.v_lshlrev_b32(v(6), 2, v(6))
    A.s_lshl_b32(s(S_T), s(S_RQ), 8)
    A.s_add_u32(s(S_T), s(S_T), hex(L_STAT))
    A.v_add_u32(v(6), s(S_T), v(6))
    for r in range(4):
        A.ds_read_b128(v(dst + 4 * r, 4), v(6), mods=f'offset:{16*r}')


def swap23(A, d, src, t):
    A.v_and_b32(v(d), 3, v(src))
    A.v_bfe_u32(v(t), v(src), 2, 1)
    A.v_lshl_add_u32(v(d), v(t), 3, v(d))
    A.v_bfe_u32(v(t), v(src), 3, 1)
    A.v_lshl_add_u32(v(d), v(t), 2, v(d))


def kqa(A, name, xbase, kvbase):
    prologue(A, name)
    set_ones(A)
    load_act(A, xbase, xbase is None)
    SB = 42
    A.s_lshl_b32(s(SB), s(S_J), 16)
    A.s_add_u32(s(SB), s(SB), hex(WF_QA))
    load_w(A, SB)
    load_cs_frags(A, SB, 208)
    A.wait(vm=0)
    gemm4(A, V_ACC, False)
    cs_partial(A, 208, 0, 244)
    stats_partial(A)
    xch_addr(A, 10, 11)
    A.ds_write_b128(v(10), v(V_ACC + 8, 4))
    A.ds_write_b128(v(10), v(V_ACC + 12, 4), mods='offset:1024')
    A.s_lshr_b32(s(43), s(S_J), 1)
    A.s_cmp_eq_u32(s(43), s(S_RQ))
    A.s_cbranch_scc0(name + '_nokv1')
    t = S_T + 2
    A.s_and_b32(s(t + 1), s(S_J), 1)
    A.s_lshl_b32(s(t), s(t + 1), 14)
    A.s_lshl_b32(s(t + 2), s(S_KH), 13)
    A.s_add_u32(s(t), s(t), s(t + 2))
    A.s_add_u32(s(t), s(t), hex(WF_KVA))
    A.s_add_u32(s(t + 2), s(t), hex(4096))
    for ks in range(8):
        A.buffer_load_dwordx4(v(208 + 4 * ks, 4), v(V_L16), s(S_WS, 4), s(t + 2 * (ks >> 2)), mods=f'offen offset:{(ks&3)*1024}')
    A.wait(vm=0)
    A.s_cmp_eq_u32(s(t + 1), 1)
    A.s_cbranch_scc1(name + '_kvV')
    for ks in range(8):
        A.v_mfma_f32_16x16x32_bf16(v(244, 4), v(208 + 4 * ks, 4), v(V_ACT + 4 * ks, 4), '0' if ks == 0 else v(244, 4))
        A.v_mfma_f32_16x16x32_bf16(v(248, 4), v(208 + 4 * ks, 4), v(V_ONES, 4), '0' if ks == 0 else v(248, 4))
    A.s_branch(name + '_kvX')
    A.label(name + '_kvV')
    A.fence(8)
    for ks in range(8):
        A.v_mfma_f32_16x16x32_bf16(v(244, 4), v(V_ACT + 4 * ks, 4), v(208 + 4 * ks, 4), '0' if ks == 0 else v(244, 4))
        A.v_mfma_f32_16x16x32_bf16(v(248, 4), v(V_ONES, 4), v(208 + 4 * ks, 4), '0' if ks == 0 else v(248, 4))
    A.label(name + '_kvX')
    A.fence(10)
    A.ds_write_b128(v(10), v(244, 4), mods='offset:2048')
    A.ds_write_b128(v(10), v(248, 4), mods='offset:3072')
    A.label(name + '_nokv1')
    A.wait(lgkm=0)
    A.s_barrier()
    A.ds_read_b128(v(12, 4), v(11))
    A.ds_read_b128(v(16, 4), v(11), mods='offset:1024')
    read_stats_row(A, 20)
    A.wait(lgkm=0)
    stats_final(A, 20, 24, 25, 1.0)
    A.v_mul_f32(v(26), hex(f2u(QSCALE)), v(25))
    epi_qk(A, V_ACC, 12, 0, 24, 26, 28, 208)
    q_store(A, 28)
    A.s_cmp_eq_u32(s(43), s(S_RQ))
    A.s_cbranch_scc0(name + '_end')
    A.s_cmp_eq_u32(s(S_KH), 0)
    A.s_cbranch_scc0(name + '_end')
    A.ds_read_b128(v(12, 4), v(11), mods='offset:2048')
    A.ds_read_b128(v(16, 4), v(11), mods='offset:3072')
    read_stats_4rows(A, 208)
    A.wait(lgkm=0)
    for r in range(4):
        A.v_add_f32(v(244 + r), v(244 + r), v(12 + r))
        A.v_add_f32(v(248 + r), v(248 + r), v(16 + r))
    t = S_T + 2
    A.s_lshl_b32(s(t), s(S_C), 1)
    A.s_lshr_b32(s(t + 1), s(S_RQ), 1)
    A.s_add_u32(s(t), s(t), s(t + 1))
    A.s_lshl_b32(s(t), s(t), 10)
    A.s_add_u32(s(t), s(t), hex(kvbase))
    A.s_and_b32(s(t + 1), s(S_RQ), 1)
    A.s_bitcmp1_b32(s(S_J), 0)
    A.s_cbranch_scc1(name + '_finV')
    for r in range(4):
        A.v_fma_f32(v(244 + r), v(24), v(248 + r), v(244 + r))
        A.v_mul_f32(v(244 + r), v(25), v(244 + r))
    A.s_lshl_b32(s(t + 1), s(t + 1), 8)
    A.s_add_u32(s(t), s(t), s(t + 1))
    A.v_and_b32(v(8), 15, v(V_LANE))
    A.v_lshlrev_b32(v(8), 4, v(8))
    A.v_lshrrev_b32(v(9), 5, v(V_LANE))
    A.v_lshl_add_u32(v(8), v(9), 9, v(8))
    A.s_branch(name + '_finS')
    A.label(name + '_finV')
    for r in range(4):
        stats_final(A, 208 + 4 * r, 224 + r, 228 + r, 1.0)
    for r in range(4):
        A.v_fma_f32(v(244 + r), v(224 + r), v(248 + r), v(244 + r))
        A.v_mul_f32(v(244 + r), v(228 + r), v(244 + r))
    A.s_lshl_b32(s(t + 1), s(t + 1), 9)
    A.s_add_u32(s(t), s(t), s(t + 1))
    A.s_add_u32(s(t), s(t), hex(64 * KB))
    swap23(A, 8, V_LANE, 9)
    A.v_lshlrev_b32(v(8), 4, v(8))
    A.v_lshrrev_b32(v(9), 5, v(V_LANE))
    A.v_lshl_add_u32(v(8), v(9), 8, v(8))
    A.label(name + '_finS')
    A.fence(2)
    A.v_bfe_u32(v(9), v(V_LANE), 4, 1)
    A.v_lshl_add_u32(v(8), v(9), 3, v(8))
    A.v_cvt_pk_bf16_f32(v(12), v(244), v(245))
    A.v_cvt_pk_bf16_f32(v(13), v(246), v(247))
    A.buffer_store_dwordx2(v(12, 2), v(8), s(S_WS, 4), s(t), mods='offen')
    A.label(name + '_end')
    A.s_endpgm()


def kqb(A, name, xbase, kvbase):
    prologue(A, name)
    set_ones(A)
    load_act(A, xbase, False)
    SB = 42
    A.s_mul_i32(s(SB), s(S_J), hex(192 * KB))
    A.s_add_u32(s(SB), s(SB), hex(WF_B))
    xch_addr(A, 10, 11)
    accs = [192, 208, 224]
    for ty in range(3):
        load_w(A, SB)
        A.wait(vm=0)
        gemm4(A, accs[ty], ty == 1)
        A.fence(8)
        load_cs_frags(A, SB, V_W)
        A.wait(vm=0)
        cs_partial(A, V_W, ty, 244)
        A.ds_write_b128(v(10), v(accs[ty] + 8, 4), mods=f'offset:{ty*2048}')
        A.ds_write_b128(v(10), v(accs[ty] + 12, 4), mods=f'offset:{ty*2048+1024}')
        if ty < 2:
            A.s_add_u32(s(SB), s(SB), hex(64 * KB))
    stats_partial(A)
    A.wait(lgkm=0)
    A.s_barrier()
    read_stats_row(A, 20)
    read_stats_4rows(A, 64)
    for ty in range(3):
        A.ds_read_b128(v(96 + 8 * ty, 4), v(11), mods=f'offset:{ty*2048}')
        A.ds_read_b128(v(100 + 8 * ty, 4), v(11), mods=f'offset:{ty*2048+1024}')
    A.wait(lgkm=0)
    stats_final(A, 20, 24, 25, 1.0)
    A.v_mul_f32(v(26), hex(f2u(QSCALE)), v(25))
    for r in range(4):
        stats_final(A, 64 + 4 * r, 80 + r, 84 + r, 1.0)
    epi_qk(A, accs[2], 112, 2, 24, 26, 28, 128)
    q_store(A, 28)
    epi_qk(A, accs[0], 96, 0, 24, 25, 12, 128)
    t = S_T + 2
    A.s_lshl_b32(s(t), s(S_J), 2)
    A.s_lshl_b32(s(t + 1), s(S_KH), 1)
    A.s_add_u32(s(t), s(t), s(t + 1))
    A.s_lshl_b32(s(t), s(t), 17)
    A.s_lshl_b32(s(t + 1), s(S_C), 1)
    A.s_lshr_b32(s(t + 2), s(S_RQ), 1)
    A.s_add_u32(s(t + 1), s(t + 1), s(t + 2))
    A.s_lshl_b32(s(t + 1), s(t + 1), 11)
    A.s_add_u32(s(t), s(t), s(t + 1))
    A.s_add_u32(s(t), s(t), hex(kvbase))
    A.s_and_b32(s(t + 2), s(S_RQ), 1)
    A.s_lshl_b32(s(t + 1), s(t + 2), 8)
    A.s_add_u32(s(t + 1), s(t + 1), s(t))
    A.s_lshl_b32(s(t + 2), s(t + 2), 9)
    A.s_add_u32(s(t + 2), s(t + 2), s(t))
    A.s_add_u32(s(t + 2), s(t + 2), hex(1024))
    A.v_and_b32(v(8), 15, v(V_LANE))
    A.v_lshlrev_b32(v(8), 4, v(8))
    A.v_bfe_u32(v(9), v(V_LANE), 4, 1)
    A.v_lshl_add_u32(v(8), v(9), 9, v(8))
    A.v_lshrrev_b32(v(9), 5, v(V_LANE))
    A.v_lshl_add_u32(v(8), v(9), 17, v(8))
    A.buffer_store_dwordx4(v(12, 4), v(8), s(S_WS, 4), s(t + 1), mods='offen')
    A.s_lshl_b32(s(S_T), s(S_KH), 7)
    A.s_add_u32(s(S_T), s(S_T), hex(L_CS + 512))
    A.v_and_b32(v(8), 15, v(V_LANE))
    A.v_lshl_add_u32(v(8), v(8), 2, s(S_T))
    A.ds_read_b32(v(128), v(8))
    A.ds_read_b32(v(129), v(8), mods='offset:64')
    A.ds_read_b32(v(130), v(8), mods='offset:256')
    A.ds_read_b32(v(131), v(8), mods='offset:320')
    A.wait(lgkm=0)
    A.v_add_f32(v(128), v(128), v(130))
    A.v_add_f32(v(129), v(129), v(131))
    av = accs[1]
    for tt in range(2):
        for r in range(4):
            i = 4 * tt + r
            A.v_add_f32(v(av + i), v(av + i), v(104 + i))
            A.v_fma_f32(v(av + i), v(80 + r), v(128 + tt), v(av + i))
            A.v_mul_f32(v(av + i), v(84 + r), v(av + i))
    for i in range(4):
        A.v_cvt_pk_bf16_f32(v(16 + i), v(av + 2 * i), v(av + 2 * i + 1))
    A.v_permlane16_swap_b32(v(16), v(18))
    A.v_permlane16_swap_b32(v(17), v(19))
    swap23(A, 8, V_LANE, 9)
    A.v_lshlrev_b32(v(8), 4, v(8))
    A.v_bfe_u32(v(9), v(V_LANE), 4, 1)
    A.v_lshl_add_u32(v(8), v(9), 17, v(8))
    A.v_lshrrev_b32(v(9), 5, v(V_LANE))
    A.v_lshl_add_u32(v(8), v(9), 8, v(8))
    A.buffer_store_dwordx4(v(16, 4), v(8), s(S_WS, 4), s(t + 2), mods='offen')
    A.s_endpgm()


def kp(A, name, obase, wf, xin, xout):
    prologue(A, name)
    load_act(A, obase, False)
    SB = 42
    A.s_lshl_b32(s(SB), s(S_J), 16)
    A.s_add_u32(s(SB), s(SB), hex(wf))
    load_w(A, SB)
    A.v_and_b32(v(12), 15, v(V_LANE))
    A.v_lshlrev_b32(v(12), 10, v(12))
    A.v_lshrrev_b32(v(13), 4, v(V_LANE))
    A.v_lshl_add_u32(v(12), v(13), 4, v(12))
    A.s_lshl_b32(s(46), s(S_C), 16)
    A.s_lshl_b32(s(47), s(S_RQ), 14)
    A.s_add_u32(s(46), s(46), s(47))
    A.s_lshl_b32(s(47), s(S_J), 1)
    A.s_add_u32(s(47), s(47), s(S_KH))
    A.s_lshl_b32(s(44), s(47), 6)
    A.s_add_u32(s(44), s(44), s(46))
    A.s_lshl_b32(s(45), s(47), 10)
    A.s_add_u32(s(45), s(45), s(46))
    if xin is None:
        A.buffer_load_dwordx4(v(16, 4), v(12), s(S_X, 4), s(44), mods='offen')
    else:
        A.s_add_u32(s(46), s(45), hex(xin))
        A.buffer_load_dwordx4(v(16, 4), v(V_L16), s(S_WS, 4), s(46), mods='offen')
    xch_addr(A, 10, 11)
    A.wait(vm=0)
    for i in range(4):
        A.v_lshlrev_b32(v(V_ACC + 2 * i), 16, v(16 + i))
        A.v_and_b32(v(V_ACC + 2 * i + 1), '0xffff0000', v(16 + i))
    gemm4(A, V_ACC, False, zero_init=(False, False, True, True))
    A.ds_write_b128(v(10), v(V_ACC + 8, 4))
    A.ds_write_b128(v(10), v(V_ACC + 12, 4), mods='offset:1024')
    A.wait(lgkm=0)
    A.s_barrier()
    A.ds_read_b128(v(20, 4), v(11))
    A.ds_read_b128(v(24, 4), v(11), mods='offset:1024')
    A.wait(lgkm=0)
    for i in range(8):
        A.v_add_f32(v(V_ACC + i), v(V_ACC + i), v(20 + i))
    for i in range(4):
        A.v_cvt_pk_bf16_f32(v(16 + i), v(V_ACC + 2 * i), v(V_ACC + 2 * i + 1))
    if xout is None:
        A.buffer_store_dwordx4(v(16, 4), v(12), s(S_OUT, 4), s(44), mods='offen')
    else:
        A.s_add_u32(s(46), s(45), hex(xout))
        A.buffer_store_dwordx4(v(16, 4), v(V_L16), s(S_WS, 4), s(46), mods='offen')
    A.s_endpgm()


V_Q = 8
V_IDX = 12
V_S = [16, 32]
V_O = 48
V_K = [64, 68, 72]
V_V = [80, 88, 96]


def init_vpad(A, regs):
    A.v_and_b32(v(4), 27, v(V_LANE))
    A.v_cmp_eq_u32('vcc', 16, v(4))
    A.v_mov_b32(v(5), '0x3f803f80')
    A.v_cndmask_b32(v(4), 0, v(5), 'vcc')
    for r in regs:
        A.v_mov_b32(v(r), v(4))


def o_store(A, obase, s_head, s_rt, src):
    A.v_and_b32(v(4), 15, v(V_LANE))
    A.v_lshlrev_b32(v(4), 4, v(4))
    A.v_bfe_u32(v(5), v(V_LANE), 4, 1)
    A.v_lshl_add_u32(v(4), v(5), 14, v(4))
    A.v_lshrrev_b32(v(5), 5, v(V_LANE))
    A.v_lshl_add_u32(v(4), v(5), 8, v(4))
    t = S_T
    A.s_lshl_b32(s(t), s(S_C), 16)
    A.s_lshl_b32(s(t + 1), s(s_rt), 15)
    A.s_add_u32(s(t), s(t), s(t + 1))
    A.s_lshl_b32(s(t + 1), s(s_head), 9)
    A.s_add_u32(s(t), s(t), s(t + 1))
    A.s_add_u32(s(t), s(t), hex(obase))
    A.buffer_store_dwordx4(v(src, 4), v(4), s(S_WS, 4), s(t), mods='offen')


def o_normalize(A, o, dst):
    A.v_rcp_f32(v(6), v(o + 8))
    for i in range(8):
        A.v_mul_f32(v(o + i), v(6), v(o + i))
    for i in range(4):
        A.v_cvt_pk_bf16_f32(v(dst + i), v(o + 2 * i), v(o + 2 * i + 1))


def ka(A, name, kvbase, obase):
    prologue(A, name)
    A.s_lshl_b32(s(44), s(S_W), 10)
    A.s_add_u32(s(45), s(44), hex(kvbase))
    for i in range(8):
        for half in range(2):
            off = i * 8192 + half * 65536
            A.s_add_u32('m0', s(44), hex(off))
            A.s_add_u32(s(46), s(45), hex(off))
            A.buffer_load_dwordx4(v(V_L16), s(S_WS, 4), s(46), mods='offen lds')
    t = S_T
    A.s_lshl_b32(s(t), s(S_C), 16)
    A.s_lshl_b32(s(t + 1), s(S_J), 13)
    A.s_add_u32(s(t), s(t), s(t + 1))
    A.s_add_u32(s(t), s(t), s(44))
    A.s_add_u32(s(t), s(t), hex(QA))
    A.buffer_load_dwordx4(v(V_Q, 4), v(V_L16), s(S_WS, 4), s(t), mods='offen')
    init_vpad(A, [r + i for r in V_V for i in range(8)])
    A.v_mov_b32(v(V_IDX), '0xdddddddd')
    for i in range(16):
        A.v_mov_b32(v(V_O + i), 0)
    A.v_and_b32(v(13), 15, v(V_LANE))
    A.v_lshlrev_b32(v(13), 4, v(13))
    A.v_lshrrev_b32(v(5), 5, v(V_LANE))
    A.v_lshl_add_u32(v(13), v(5), 8, v(13))
    A.v_add_u32(v(13), hex(65536), v(13))
    A.s_mov_b32(s(48), '0x0000ffff')
    A.s_mov_b32(s(49), '0x0000ffff')
    A.wait(vm=0)
    A.s_barrier()
    NT = 64

    def rdK(t):
        A.ds_read_b128(v(V_K[t % 3], 4), v(V_L16), mods=f'offset:{t*1024}')

    def rdV(t):
        A.s_mov_b64('exec', s(48, 2))
        A.ds_read_b128(v(V_V[t % 3], 4), v(13), mods=f'offset:{t*1024}')
        A.ds_read_b128(v(V_V[t % 3] + 4, 4), v(13), mods=f'offset:{t*1024+512}')
        A.s_mov_b64('exec', -1)

    def qk(t):
        A.v_mfma_f32_32x32x16_bf16(v(V_S[t & 1], 16), v(V_K[t % 3], 4), v(V_Q, 4), '0')

    def pv(t, g):
        A.v_smfmac_f32_32x32x32_bf16(v(V_O, 16), v(V_V[t % 3] + 4 * g, 4), v(V_S[t & 1] + 8 * g, 8), v(V_IDX))

    def ex(t, i):
        A.v_exp_f32(v(V_S[t & 1] + i), v(V_S[t & 1] + i))

    rdK(0); rdK(1); rdV(0)
    A.wait(lgkm=3)
    qk(0)
    for t in range(NT):
        if t + 2 < NT:
            rdK(t + 2)
        if t + 1 < NT:
            rdV(t + 1)
        ex(t, 0); ex(t, 1)
        if t > 0:
            pv(t - 1, 1)
        ex(t, 2); ex(t, 3); ex(t, 4); ex(t, 5)
        n_new = (1 if t + 2 < NT else 0) + (2 if t + 1 < NT else 0)
        A.wait(lgkm=n_new)
        if t + 1 < NT:
            qk(t + 1)
        ex(t, 6); ex(t, 7); ex(t, 8); ex(t, 9); ex(t, 10)
        pv(t, 0)
        for i in range(11, 16):
            ex(t, i)
    pv(NT - 1, 1)
    o_normalize(A, V_O, 16)
    A.s_lshl_b32(s(50), s(S_J), 2)
    A.s_add_u32(s(50), s(50), s(S_RQ))
    o_store(A, obase, 50, S_KH, 16)
    A.s_endpgm()


def kb(A, name, kvbase, obase):
    prologue(A, name)
    VK = 64
    VV = 100
    MK0, MK8 = 176, 192
    A.s_lshl_b32(s(44), s(S_W), 10)
    t = S_T
    A.s_lshl_b32(s(t), s(S_C), 16)
    A.s_lshl_b32(s(t + 1), s(S_J), 13)
    A.s_add_u32(s(t), s(t), s(t + 1))
    A.s_add_u32(s(t), s(t), s(44))
    A.s_add_u32(s(t), s(t), hex(QA))
    A.buffer_load_dwordx4(v(V_Q, 4), v(V_L16), s(S_WS, 4), s(t), mods='offen')
    init_vpad(A, [VV + i for i in range(72)])
    A.s_lshl_b32(s(50), s(S_J), 2)
    A.s_add_u32(s(50), s(50), s(S_RQ))
    A.s_lshl_b32(s(51), s(S_C), 1)
    A.s_add_u32(s(51), s(51), s(S_KH))
    A.s_lshl_b32(s(52), s(50), 17)
    A.s_add_u32(s(52), s(52), hex(kvbase))
    A.v_and_b32(v(13), 15, v(V_LANE))
    A.v_lshlrev_b32(v(13), 4, v(13))
    A.v_lshrrev_b32(v(5), 5, v(V_LANE))
    A.v_lshl_add_u32(v(13), v(5), 8, v(13))
    A.s_mov_b32(s(48), '0x0000ffff')
    A.s_mov_b32(s(49), '0x0000ffff')
    for i in range(9):
        A.s_add_i32(s(53), s(51), i - 8)
        A.s_max_i32(s(53), s(53), 0)
        A.s_lshl_b32(s(53), s(53), 11)
        A.s_add_u32(s(53), s(53), s(52))
        A.buffer_load_dwordx4(v(VK + 4 * i, 4), v(V_L16), s(S_WS, 4), s(53), mods='offen')
        A.s_mov_b64('exec', s(48, 2))
        A.buffer_load_dwordx4(v(VV + 8 * i, 4), v(13), s(S_WS, 4), s(53), mods='offen offset:1024')
        A.buffer_load_dwordx4(v(VV + 8 * i + 4, 4), v(13), s(S_WS, 4), s(53), mods='offen offset:1536')
        A.s_mov_b64('exec', -1)
    A.v_mov_b32(v(V_IDX), '0xdddddddd')
    for i in range(16):
        A.v_mov_b32(v(V_O + i), 0)
    A.v_and_b32(v(4), 31, v(V_LANE))
    A.v_lshrrev_b32(v(5), 5, v(V_LANE))
    A.v_lshlrev_b32(v(5), 2, v(5))
    A.v_sub_u32(v(4), v(4), v(5))
    A.v_mov_b32(v(6), hex(f2u(-1e9 * 1.4426950408889634)))
    for r in range(16):
        kl = (r & 3) + 8 * (r >> 2)
        A.v_cmp_gt_i32('vcc', kl, v(4))
        A.v_cndmask_b32(v(MK0 + r), v(6), 0, 'vcc') if False else A.I('v_cndmask_b32_e64', v(MK0 + r), v(6), '0', 'vcc')
        A.I('v_cndmask_b32_e64', v(MK8 + r), '0', v(6), 'vcc')
    A.wait(vm=0)
    for i in range(9):
        lab = f'{name}_skip{i}'
        if i < 8:
            A.s_cmp_lt_i32(s(51), 8 - i)
            A.s_cbranch_scc1(lab)
        c = v(MK0, 16) if i == 0 else (v(MK8, 16) if i == 8 else '0')
        A.v_mfma_f32_32x32x16_bf16(v(V_S[0], 16), v(VK + 4 * i, 4), v(V_Q, 4), c)
        for r in range(16):
            A.v_exp_f32(v(V_S[0] + r), v(V_S[0] + r))
        A.v_smfmac_f32_32x32x32_bf16(v(V_O, 16), v(VV + 8 * i, 4), v(V_S[0], 8), v(V_IDX))
        A.v_smfmac_f32_32x32x32_bf16(v(V_O, 16), v(VV + 8 * i + 4, 4), v(V_S[0] + 8, 8), v(V_IDX))
        if i < 8:
            A.label(lab)
            A.fence(4)
    o_normalize(A, V_O, 16)
    o_store(A, obase, 50, S_KH, 16)
    A.s_endpgm()


def main():
    A = Asm()
    launches = []

    def L(name, grid, block, lds):
        launches.append((name, grid, block, lds))

    k0(A); L('k0_kernel', 194, 256, 0)
    GL = 72 * KB
    kqa(A, 'qa1_kernel', None, KVA[0]); L('qa1_kernel', 256, 512, GL)
    ka(A, 'aa1_kernel', KVA[0], OB[0]); L('aa1_kernel', 256, 512, 128 * KB)
    kp(A, 'p1_kernel', OB[0], WF_OA, None, XB[0]); L('p1_kernel', 256, 512, GL)
    kqb(A, 'qb1_kernel', XB[0], KVB[0]); L('qb1_kernel', 256, 512, GL)
    kb(A, 'ab1_kernel', KVB[0], OB[1]); L('ab1_kernel', 256, 512, 0)
    kp(A, 'p2_kernel', OB[1], WF_OB, XB[0], XB[1]); L('p2_kernel', 256, 512, GL)
    kqa(A, 'qa2_kernel', XB[1], KVA[1]); L('qa2_kernel', 256, 512, GL)
    ka(A, 'aa2_kernel', KVA[1], OB[2]); L('aa2_kernel', 256, 512, 128 * KB)
    kp(A, 'p3_kernel', OB[2], WF_OA, XB[1], XB[2]); L('p3_kernel', 256, 512, GL)
    kqb(A, 'qb2_kernel', XB[2], KVB[1]); L('qb2_kernel', 256, 512, GL)
    kb(A, 'ab2_kernel', KVB[1], OB[3]); L('ab2_kernel', 256, 512, 0)
    kp(A, 'p4_kernel', OB[3], WF_OB, XB[2], None); L('p4_kernel', 256, 512, GL)
    body = A.finish()
    hdr = ''
    for (n, g, b, l) in launches:
        hdr += f'; @launch kernel={n} grid=({g},1,1) block=({b},1,1) lds={l}\n'
    hdr += '.amdgcn_target "amdgcn-amd-amdhsa--gfx950"\n.text\n'
    tail = '.section .rodata,"a"\n'
    for n in dict.fromkeys(x[0] for x in launches):
        tail += f'''.p2align 6
.amdhsa_kernel {n}
  .amdhsa_next_free_vgpr 256
  .amdhsa_next_free_sgpr 102
  .amdhsa_accum_offset 256
  .amdhsa_group_segment_fixed_size 0
  .amdhsa_kernarg_size 88
  .amdhsa_user_sgpr_count 2
  .amdhsa_user_sgpr_kernarg_segment_ptr 1
  .amdhsa_system_sgpr_workgroup_id_x 1
.end_amdhsa_kernel
'''
    out = sys.argv[1] if len(sys.argv) > 1 else f'cdna_kernels/{NAME}.s'
    open(out, 'w').write(hdr + body + tail)
    print('wrote', out, 'pads', A.npad)


main()
```
